```python
import torch

def _softmax(x, axis=-1):
    return torch.softmax(x, dim=axis)
def _gelu(x):
    return torch.nn.functional.gelu(x, approximate="tanh")
def _silu(x):
    return torch.nn.functional.silu(x)
def _sigmoid(x):
    return torch.sigmoid(x)
def _layernorm(x, axis=-1, eps=1e-5):
    m = x.mean(dim=axis, keepdim=True)
    v = x.var(dim=axis, keepdim=True, unbiased=False)
    return (x - m) / torch.sqrt(v + eps)
def _scatter_add(tgt, idx, src, axis=0):
    return tgt.clone().index_add_(axis, idx, src)
def _segment_sum(src, seg, n):
    out = torch.zeros((n,) + src.shape[1:], dtype=src.dtype)
    return out.index_add_(0, seg, src)
def _pad(x, pw):
    flat = tuple(v for pair in reversed(pw) for v in pair)
    return torch.nn.functional.pad(x, flat)

kernel_name = 'concat_heads__sliding_block_cached__mha_block_cached__decode'

def setup_inputs():

    _w = (lambda a: (lambda t: t.to(torch.bfloat16) if t.is_floating_point() else t)(torch.as_tensor(a)))
    def _A_setup():
        B, Sq, D = 8, 1, 512
        Hq, Hkv, Sk, Dh = 32, 8, 4096, 128
        assert Hq % Hkv == 0, (Hq, Hkv)
        return {
            "x": _w((lambda *s: torch.randn(*s, dtype=torch.bfloat16) * 0.8)(B, Sq, D)),
            "k_cache": _w((lambda *s: torch.randn(*s, dtype=torch.bfloat16) * 1.6)(B, Hkv, Sk, Dh)),
            "v_cache": _w((lambda *s: torch.randn(*s, dtype=torch.bfloat16) * 0.2)(B, Hkv, Sk, Dh)),
            "wq": _w((lambda *s: torch.randn(*s, dtype=torch.bfloat16) * 1.6)(D, Hq * Dh) * (D ** -0.5)),
            "wo": _w((lambda *s: torch.randn(*s, dtype=torch.bfloat16) * 0.2)(Hq * Dh, D) * ((Hq * Dh) ** -0.5)),
        }
    _A_in = _A_setup()

    def _B_setup():
        B, Sq, D = 8, 1, 512
        H, Sk, Dh = 32, 4096, 128
        return {
            "x": _w((lambda *s: torch.randn(*s, dtype=torch.bfloat16) * 0.8)(B, Sq, D)),
            "k_cache": _w((lambda *s: torch.randn(*s, dtype=torch.bfloat16) * 1.6)(B, H, Sk, Dh)),
            "v_cache": _w((lambda *s: torch.randn(*s, dtype=torch.bfloat16) * 0.2)(B, H, Sk, Dh)),
            "wq": _w((lambda *s: torch.randn(*s, dtype=torch.bfloat16) * 1.6)(D, H * Dh) * (D ** -0.5)),
            "wo": _w((lambda *s: torch.randn(*s, dtype=torch.bfloat16) * 0.2)(H * Dh, D) * ((H * Dh) ** -0.5)),
        }
    _B_in = _B_setup()

    return {
        "A_x": _A_in["x"],
        "A_k_cache": _A_in["k_cache"],
        "A_v_cache": _A_in["v_cache"],
        "A_wq": _A_in["wq"],
        "A_wo": _A_in["wo"],
        "B_x": _B_in["x"],
        "B_k_cache": _B_in["k_cache"],
        "B_v_cache": _B_in["v_cache"],
        "B_wq": _B_in["wq"],
        "B_wo": _B_in["wo"],
    }

def reference(A_x, A_k_cache, A_v_cache, A_wq, A_wo, B_x, B_k_cache, B_v_cache, B_wq, B_wo):
    def _A_ref(x, k_cache, v_cache, wq, wo):
        B, Sq, D = x.shape
        Hq, Dh = 32, 128
        Hkv, Sk = k_cache.shape[1], k_cache.shape[2]
        W = min(4096, max(256, Sk // 4))
        rep = Hq // Hkv
        q = (lambda x, *d: x.permute(*d))((x @ wq).reshape(B, Sq, Hq, Dh), 0, 2, 1, 3)
        k = (lambda x, n, axis: torch.repeat_interleave(x, n, dim=axis))(k_cache[:, :, Sk - W:, :], rep, axis=1)
        v = (lambda x, n, axis: torch.repeat_interleave(x, n, dim=axis))(v_cache[:, :, Sk - W:, :], rep, axis=1)
        scores = torch.einsum("bhqd,bhkd->bhqk", q, k) * (Dh ** -0.5)
        p = _softmax(scores, axis=-1)
        o = torch.einsum("bhqk,bhkd->bhqd", p, v)
        return (lambda x, *d: x.permute(*d))(o, 0, 2, 1, 3).reshape(B, Sq, Hq * Dh) @ wo

    def _B_ref(x, k_cache, v_cache, wq, wo):
        B, Sq, D = x.shape
        H, Dh = 32, 128
        q = (lambda x, *d: x.permute(*d))((x @ wq).reshape(B, Sq, H, Dh), 0, 2, 1, 3)
        scores = torch.einsum("bhqd,bhkd->bhqk", q, k_cache) * (Dh ** -0.5)
        p = _softmax(scores, axis=-1)
        o = torch.einsum("bhqk,bhkd->bhqd", p, v_cache)
        return (lambda x, *d: x.permute(*d))(o, 0, 2, 1, 3).reshape(B, Sq, H * Dh) @ wo

    a = _A_ref(A_x, A_k_cache, A_v_cache, A_wq, A_wo)
    b = _B_ref(B_x, B_k_cache, B_v_cache, B_wq, B_wo)
    return torch.concatenate([a, b], axis=-1)
```

```python
import sys, struct
KN = "concat_heads__sliding_block_cached__mha_block_cached__decode_kernel"
HEADER = open("concat_heads__sliding_block_cached__mha_block_cached__decode.s.ref").read().split("; Override launch")[0]

def f2u(x): return struct.unpack("<I", struct.pack("<f", x))[0]

def gen(S=6, ts=0, kvflag="nt", aflag="nt", wflag="nt", lds=8192, prio=0, hprio=3):
    L = []
    def a(s): L.append("    " + s)
    def lab(s): L.append(s + ":")
    def cm(s): L.append("    ; " + s)
    fl = lambda f: (" " + f) if f else ""
    CSC = 128 ** -0.5 * 1.4426950408889634
    W = 8 * (S - 1) + 4
    RING = 64
    QP = [0, 2048]
    OP = [4096, 4096 + 2304]
    OPS = 576
    SCR = 8704
    CNT = SCR + 2048
    ldsbytes = CNT + 64
    lds = max(lds, ldsbytes)
    sW, sB, sH, sW4 = "s3", "s7", "s6", "s8"
    sC = "s9"
    def stamp(i):
        if ts:
            a(f"s_memrealtime s[80:81]"); a("s_waitcnt lgkmcnt(0)"); a(f"s_mov_b32 s{64+i}, s80")
    L.append(HEADER.rstrip())
    L.append(f"; @launch grid=(256,1,1) block=(512,1,1) lds={lds}")
    L.append('.amdgcn_target "amdgcn-amd-amdhsa--gfx950"')
    L.append(".text"); L.append(f".globl {KN}"); L.append(".p2align 8"); L.append(f".type {KN},@function"); lab(KN)
    a("s_cmp_ge_u32 s2, 256"); a("s_cbranch_scc1 L_end")
    a("s_load_dwordx16 s[16:31], s[0:1], 0")
    a("s_load_dwordx8 s[32:39], s[0:1], 64")
    a("s_load_dwordx2 s[40:41], s[0:1], 96")
    if ts: a("s_memrealtime s[78:79]")
    a("v_lshrrev_b32 v5, 6, v0")
    a("v_and_b32 v0, 63, v0")
    a("v_readfirstlane_b32 s3, v5")
    a("s_and_b32 s4, s2, 7"); a("s_lshr_b32 s5, s2, 3")
    a("s_lshl_b32 s6, s4, 2"); a("s_and_b32 s10, s5, 3"); a("s_add_u32 s6, s6, s10")
    a("s_lshr_b32 s7, s5, 2")
    a("s_and_b32 s8, s3, 3")
    a("v_lshrrev_b32 v1, 4, v0")
    a("v_and_b32 v2, 15, v0")
    cm("voffK = pi(c)*256 + g*16 + w4*4096, pi(i) = 4*(i&3) + (i>>2); voffV = lane*16 + w4*4096")
    a("v_and_b32 v5, 3, v2"); a("v_lshlrev_b32 v5, 10, v5")
    a("v_lshrrev_b32 v6, 2, v2"); a("v_lshl_add_u32 v5, v6, 8, v5")
    a("v_lshl_add_u32 v5, v1, 4, v5")
    a("s_lshl_b32 s10, s8, 12")
    a("v_add_u32 v3, s10, v5")
    a("v_lshl_add_u32 v4, v0, 4, s10")
    cm("slab offsets")
    a("s_lshl_b32 s11, s7, 5"); a("s_add_u32 s11, s11, s6"); a("s_lshl_b32 s11, s11, 20")
    a("s_lshl_b32 s12, s7, 3"); a("s_lshr_b32 s13, s6, 2"); a("s_add_u32 s12, s12, s13"); a("s_lshl_b32 s12, s12, 20")
    a("s_add_u32 s12, s12, 786432")
    a("s_mov_b32 s47, 0x20000"); a("s_mov_b32 s51, 0x20000"); a("s_mov_b32 s55, 0x20000"); a("s_mov_b32 s59, 0x20000")
    a("s_cmp_ge_u32 s3, 4")
    a("s_cbranch_scc1 L_helper")
    a("s_mov_b32 s92, 0")
    a("s_waitcnt lgkmcnt(0)")
    a("s_add_u32 s44, s28, s11"); a("s_addc_u32 s45, s29, 0"); a("s_mov_b32 s46, 0x100000")
    a("s_add_u32 s48, s30, s11"); a("s_addc_u32 s49, s31, 0"); a("s_mov_b32 s50, 0x100000")
    def issueK(s, f):
        for m in range(4):
            r = RING + 32 * s + 4 * m
            a(f"buffer_load_dwordx4 v[{r}:{r+3}], v3, s[44:47], 0 offen offset:{64*m}{fl(f)}")
        a("v_add_u32 v3, 0x4000, v3")
    def issueV(s, f):
        for m in range(4):
            r = RING + 32 * s + 16 + 4 * m
            a(f"buffer_load_dwordx4 v[{r}:{r+3}], v4, s[48:51], 0 offen offset:{1024*m}{fl(f)}")
        a("v_add_u32 v4, 0x4000, v4")
    for s in range(S):
        issueK(s, kvflag); issueV(s, kvflag)
    if prio: a(f"s_setprio {prio}")
    a("s_call_b64 s[90:91], F_consts")
    a("s_mov_b32 s14, 64")
    a(f"s_mov_b32 s15, {QP[1]}")
    a(f"s_mov_b32 s60, {OP[1]}")
    a("s_barrier")
    stamp(0)
    a("s_branch L_buildq")
    lab("L_helper")
    a("s_mov_b32 s92, 1")
    if hprio: a(f"s_setprio {hprio}")
    cm("x: lane group g needs 32 values: byte off = b*1024 + 256*w4 + 64*g")
    a("s_lshl_b32 s13, s7, 10"); a("s_lshl_b32 s10, s8, 8"); a("s_add_u32 s13, s13, s10")
    a("v_lshl_add_u32 v60, v1, 6, s13")
    cm("wq voffset = (128*w4 + 32*g)*8192 + 16*c + h*256")
    a("s_lshl_b32 s13, s8, 20"); a("s_lshl_b32 s10, s6, 8"); a("s_add_u32 s13, s13, s10")
    a("v_lshl_add_u32 v61, v1, 18, s13")
    a("v_lshl_add_u32 v61, v2, 4, v61")
    cm("wo voffset = (h*128 + 32*g)*1024 + 256*w4 + 16*c")
    a("s_lshl_b32 s13, s6, 17"); a("s_lshl_b32 s10, s8, 8"); a("s_add_u32 s13, s13, s10")
    a("v_lshl_add_u32 v62, v1, 15, s13")
    a("v_lshl_add_u32 v62, v2, 4, v62")
    a("s_mov_b32 s54, 0x400000"); a("s_mov_b32 s58, 8192")
    a("s_waitcnt lgkmcnt(0)")
    a("s_mov_b32 s56, s26"); a("s_mov_b32 s57, s27")
    a("s_mov_b32 s52, s32"); a("s_mov_b32 s53, s33")
    a("s_add_u32 s44, s18, s12"); a("s_addc_u32 s45, s19, 0"); a("s_mov_b32 s46, 0x40000")
    a("s_add_u32 s48, s20, s12"); a("s_addc_u32 s49, s21, 0"); a("s_mov_b32 s50, 0x40000")
    def loadx():
        for k in range(4):
            a(f"buffer_load_dwordx4 v[{16+4*k}:{19+4*k}], v60, s[56:59], 0 offen offset:{16*k}")
    loadx()
    a("v_mov_b32 v63, v61"); a("s_mov_b32 s61, 8192")
    a("s_call_b64 s[90:91], F_loadw")
    a("s_call_b64 s[90:91], F_consts")
    cm("LDS counter init (wave 4), published by barrier 1")
    a(f"v_mov_b32 v5, {CNT}"); a("v_mov_b32 v6, 0")
    a("s_cmp_lg_u32 s3, 4"); a("s_cbranch_scc1 L_h1")
    a("ds_write_b32 v5, v6")
    lab("L_h1")
    a("s_call_b64 s[90:91], F_proj")
    def write_part(base_s):
        a("v_lshlrev_b32 v5, 5, v2"); a("v_lshl_add_u32 v5, v1, 4, v5"); a(f"v_add_u32 v5, {base_s}, v5")
        a("s_mov_b32 exec_hi, 0")
        a("ds_write_b128 v5, v[36:39]")
        a("s_mov_b64 exec, -1")
    a(f"s_lshl_b32 s10, s8, 9"); a(f"s_add_u32 s10, s10, {QP[1]}")
    write_part("s10")
    cm("A: x and wq loads")
    a("s_mov_b32 s56, s16"); a("s_mov_b32 s57, s17")
    a("s_mov_b32 s52, s22"); a("s_mov_b32 s53, s23")
    a("s_waitcnt lgkmcnt(0)")
    a("s_barrier")
    loadx()
    a("v_mov_b32 v63, v61")
    a("s_call_b64 s[90:91], F_loadw")
    cm("waves 4,5 clear this workgroup's hand-off slots (X = w4), then count in d_debug[b]")
    a("s_cmp_ge_u32 s8, 2"); a("s_cbranch_scc1 L_h2")
    a("s_lshl_b32 s10, s8, 19"); a("s_lshl_b32 s13, s7, 16"); a("s_add_u32 s10, s10, s13")
    a("s_lshl_b32 s13, s6, 11"); a("s_add_u32 s10, s10, s13")
    a("v_lshl_add_u32 v5, v0, 4, s10")
    for r in range(192, 196): a(f"v_mov_b32 v{r}, -1")
    a("global_store_dwordx4 v5, v[192:195], s[40:41] sc1")
    a("global_store_dwordx4 v5, v[192:195], s[40:41] offset:1024 sc1")
    a("s_waitcnt vmcnt(0)")
    a("s_lshl_b32 s10, s7, 2"); a("v_mov_b32 v5, s10"); a("v_mov_b32 v6, 1")
    a("s_mov_b64 exec, 1")
    a("global_atomic_add v5, v6, s[38:39] sc1")
    a("s_mov_b64 exec, -1")
    lab("L_h2")
    a("s_call_b64 s[90:91], F_proj")
    a(f"s_lshl_b32 s10, s8, 9"); a(f"s_add_u32 s10, s10, {QP[0]}")
    write_part("s10")
    cm("ring prefetch for A")
    for s in range(S):
        issueK(s, aflag); issueV(s, aflag)
    a("s_mov_b32 s62, 4")
    a("s_call_b64 s[90:91], F_sync4")
    a("s_mov_b32 s14, 16")
    a(f"s_mov_b32 s15, {QP[0]}")
    a(f"s_mov_b32 s60, {OP[0]}")
    lab("L_buildq")
    a("v_lshl_add_u32 v5, v0, 3, s15")
    for j in range(4): a(f"ds_read_b64 v[{44+2*j}:{45+2*j}], v5 offset:{512*j}")
    a(f"s_lshl_b32 s10, s3, 8"); a(f"s_add_u32 s10, s10, {SCR}")
    a("v_lshl_add_u32 v6, v0, 2, s10")
    a("v_lshl_add_u32 v7, v1, 4, s10")
    a("s_waitcnt lgkmcnt(0)")
    a("v_add_f32 v44, v44, v46"); a("v_add_f32 v45, v45, v47"); a("v_add_f32 v48, v48, v50"); a("v_add_f32 v49, v49, v51")
    a("v_add_f32 v44, v44, v48"); a("v_add_f32 v45, v45, v49")
    a("v_cvt_pk_bf16_f32 v44, v44, v45")
    a("ds_write_b32 v6, v44")
    a("s_waitcnt lgkmcnt(0)")
    for m in range(4): a(f"ds_read_b128 v[{16+4*m}:{19+4*m}], v7 offset:{64*m}")
    a("v_mov_b32 v40, 0xff7fffff")
    a("v_mov_b32 v41, 0"); a("v_mov_b32 v42, 0")
    for r in range(36, 40): a(f"v_mov_b32 v{r}, 0")
    a("s_waitcnt lgkmcnt(0)")
    assert kvflag == aflag, "shared loop uses one flag"
    lab("L_att")
    for s in range(S):
        kb = RING + 32 * s; vb = kb + 16
        a(f"s_waitcnt vmcnt({W})")
        for m in range(4):
            a(f"v_mfma_f32_16x16x32_bf16 v[32:35], v[{kb+4*m}:{kb+4*m+3}], v[{16+4*m}:{19+4*m}], {'0' if m == 0 else 'v[32:35]'}")
        issueK(s, kvflag)
        a("s_nop 2")
        a("v_max3_f32 v5, v32, v33, v34")
        a("v_max_f32 v5, v5, v35")
        a("v_cmp_gt_f32 vcc, v5, v40")
        a(f"s_cbranch_vccnz L_rare{s}")
        lab(f"L_back{s}")
        for r in range(4): a(f"v_fma_f32 v{44+r}, v{32+r}, {sC}, -v41")
        for r in range(4): a(f"v_exp_f32 v{44+r}, v{44+r}")
        a("v_add_f32 v6, v44, v45")
        a("v_cvt_pk_bf16_f32 v48, v44, v45")
        a("v_add_f32 v7, v46, v47")
        a("v_cvt_pk_bf16_f32 v49, v46, v47")
        a("v_add_f32 v42, v42, v6")
        def perm(dst, src, half):
            for m in range(4): a(f"v_perm_b32 v{dst+m}, v{src}, v{src}, v{8+4*half+m}")
        perm(52, 48, 0)
        perm(56, 48, 1)
        a("v_add_f32 v42, v42, v7")
        a(f"s_waitcnt vmcnt({W})")
        a(f"v_mfma_f32_16x16x32_bf16 v[36:39], v[52:55], v[{vb}:{vb+3}], v[36:39]")
        perm(52, 49, 0)
        a(f"v_mfma_f32_16x16x32_bf16 v[36:39], v[56:59], v[{vb+4}:{vb+7}], v[36:39]")
        perm(56, 49, 1)
        a(f"v_mfma_f32_16x16x32_bf16 v[36:39], v[52:55], v[{vb+8}:{vb+11}], v[36:39]")
        a("s_sub_u32 s14, s14, 1")
        a(f"v_mfma_f32_16x16x32_bf16 v[36:39], v[56:59], v[{vb+12}:{vb+15}], v[36:39]")
        issueV(s, kvflag)
        a("s_cmp_eq_u32 s14, 0")
        if s < S - 1: a("s_cbranch_scc1 L_attdone")
        else: a("s_cbranch_scc0 L_att")
    lab("L_attdone")
    cm("l across the four lane groups")
    a("v_mov_b32 v5, v42"); a("s_nop 1"); a("v_permlane32_swap_b32 v5, v42"); a("v_add_f32 v42, v42, v5")
    a("v_mov_b32 v5, v42"); a("s_nop 1"); a("v_permlane16_swap_b32 v5, v42"); a("v_add_f32 v41, v42, v5")
    a(f"s_mul_i32 s10, s8, {OPS}"); a("s_add_u32 s10, s10, s60")
    write_part("s10")
    a("v_mov_b32 v5, s10")
    a("s_mov_b64 exec, 1")
    a("ds_write_b64 v5, v[40:41] offset:512")
    a("s_mov_b64 exec, -1")
    a("s_cmp_eq_u32 s92, 1"); a("s_cbranch_scc1 L_h3")
    stamp(1)
    a("s_waitcnt lgkmcnt(0)")
    a("s_barrier")
    if ts:
        a("s_cmp_lg_u32 s3, 0"); a("s_cbranch_scc1 L_end")
        a("s_lshl_b32 s10, s2, 6"); a("s_add_u32 s10, s10, 0x20000000")
        a("v_mov_b32 v5, s10"); a("v_mov_b32 v6, s64"); a("v_mov_b32 v7, s65")
        a("s_mov_b64 exec, 1")
        a("global_store_dwordx2 v5, v[6:7], s[40:41] offset:24")
    a("s_endpgm")
    for s in range(S):
        lab(f"L_rare{s}")
        a("v_mov_b32 v6, v5"); a("s_nop 1"); a("v_permlane32_swap_b32 v6, v5"); a("v_max_f32 v5, v5, v6")
        a("v_mov_b32 v6, v5"); a("s_nop 1"); a("v_permlane16_swap_b32 v6, v5"); a("v_max3_f32 v5, v5, v6, v40")
        a("v_sub_f32 v6, v40, v5"); a(f"v_mul_f32 v6, {sC}, v6"); a("v_exp_f32 v6, v6")
        a("v_mov_b32 v40, v5"); a(f"v_mul_f32 v41, {sC}, v5")
        for r in range(36, 40): a(f"v_mul_f32 v{r}, v{r}, v6")
        a("v_mul_f32 v42, v42, v6")
        a(f"s_branch L_back{s}")
    lab("L_h3")
    stamp(2)
    a("s_waitcnt vmcnt(0)")
    a("s_mov_b32 s52, s24"); a("s_mov_b32 s53, s25")
    a("v_mov_b32 v63, v62"); a("s_mov_b32 s61, 1024")
    a("s_call_b64 s[90:91], F_loadw")
    a("s_mov_b32 s62, 8")
    a("s_call_b64 s[90:91], F_sync4")
    cm("all consumers of batch b have cleared their slots?")
    a("s_lshl_b32 s10, s7, 2"); a("v_mov_b32 v5, s10"); a("s_mov_b32 s63, 0x100000")
    lab("L_clr")
    a("global_load_dword v6, v5, s[38:39] sc1")
    a("s_waitcnt vmcnt(0)")
    a("v_readfirstlane_b32 s10, v6")
    a("s_cmp_ge_u32 s10, 64"); a("s_cbranch_scc1 L_clrdone")
    a("s_sleep 8")
    a("s_sub_u32 s63, s63, 1"); a("s_cbranch_scc0 L_clr")
    lab("L_clrdone")
    a("s_mov_b32 s42, 0")
    lab("L_fin")
    cm("combine the four partials at LDS s60")
    a("v_mov_b32 v5, s60")
    a("v_lshl_add_u32 v6, v0, 3, s60")
    for j in range(4): a(f"ds_read_b64 v[{192+2*j}:{193+2*j}], v5 offset:{OPS*j+512}")
    for j in range(4): a(f"ds_read_b64 v[{200+2*j}:{201+2*j}], v6 offset:{OPS*j}")
    a(f"s_lshl_b32 s10, s3, 8"); a(f"s_add_u32 s10, s10, {SCR}")
    a("v_lshl_add_u32 v6, v0, 2, s10")
    a("v_lshl_add_u32 v7, v1, 6, s10")
    a("s_waitcnt lgkmcnt(4)")
    a("v_max3_f32 v5, v192, v194, v196"); a("v_max_f32 v5, v5, v198")
    for j in range(4): a(f"v_sub_f32 v{192+2*j}, v{192+2*j}, v5")
    for j in range(4): a(f"v_mul_f32 v{192+2*j}, {sC}, v{192+2*j}")
    for j in range(4): a(f"v_exp_f32 v{192+2*j}, v{192+2*j}")
    a("v_mul_f32 v5, v192, v193")
    for j in range(1, 4): a(f"v_fmac_f32 v5, v{192+2*j}, v{193+2*j}")
    a("v_rcp_f32 v5, v5")
    a("s_waitcnt lgkmcnt(0)")
    a("v_mul_f32 v44, v192, v200"); a("v_mul_f32 v45, v192, v201")
    for j in range(1, 4):
        a(f"v_fmac_f32 v44, v{192+2*j}, v{200+2*j}"); a(f"v_fmac_f32 v45, v{192+2*j}, v{201+2*j}")
    a("v_mul_f32 v44, v44, v5"); a("v_mul_f32 v45, v45, v5")
    a("v_cvt_pk_bf16_f32 v44, v44, v45")
    a("ds_write_b32 v6, v44")
    a("s_waitcnt lgkmcnt(0)")
    for k in range(4): a(f"ds_read_b128 v[{16+4*k}:{19+4*k}], v7 offset:{16*k}")
    cm("publish address: X*512K + b*64K + (8*w4 + (c>>1))*2048 + h*64 + (8*(c&1) + 4*g)*4")
    a("s_lshl_b32 s10, s42, 19"); a("s_lshl_b32 s13, s7, 16"); a("s_add_u32 s43, s10, s13")
    a("s_lshl_b32 s10, s8, 14"); a("s_add_u32 s10, s10, s43"); a("s_lshl_b32 s13, s6, 6"); a("s_add_u32 s10, s10, s13")
    a("v_lshrrev_b32 v5, 1, v2"); a("v_lshl_add_u32 v5, v5, 11, s10")
    a("v_and_b32 v6, 1, v2"); a("v_lshl_add_u32 v5, v6, 5, v5"); a("v_lshl_add_u32 v208, v1, 4, v5")
    a("s_waitcnt lgkmcnt(0)")
    a("s_call_b64 s[90:91], F_proj")
    a("s_mov_b32 exec_hi, 0")
    a("global_store_dwordx4 v208, v[36:39], s[40:41] sc1")
    a("s_mov_b64 exec, -1")
    a("s_cmp_eq_u32 s42, 0"); a("s_cbranch_scc0 L_poll")
    a("s_mov_b32 s52, s34"); a("s_mov_b32 s53, s35")
    a("v_mov_b32 v63, v62")
    a("s_call_b64 s[90:91], F_loadw")
    lab("L_poll")
    a("s_cmp_lg_u32 s3, 4"); a("s_cbranch_scc1 L_polled")
    a("s_lshl_b32 s10, s6, 11"); a("s_add_u32 s10, s10, s43")
    a("v_lshl_add_u32 v5, v0, 4, s10")
    a("s_mov_b32 s63, 0x100000")
    lab("L_pl")
    a("global_load_dwordx4 v[192:195], v5, s[40:41] sc1")
    a("global_load_dwordx4 v[196:199], v5, s[40:41] offset:1024 sc1")
    a("s_waitcnt vmcnt(0)")
    a("v_max3_u32 v6, v192, v193, v194"); a("v_max3_u32 v7, v195, v196, v197"); a("v_max3_u32 v6, v6, v198, v199"); a("v_max_u32 v6, v6, v7")
    a("v_cmp_eq_u32 vcc, -1, v6")
    a("s_cbranch_vccz L_got")
    a("s_sleep 2")
    a("s_sub_u32 s63, s63, 1"); a("s_cbranch_scc0 L_pl")
    lab("L_got")
    for r in range(4): a(f"v_add_f32 v{192+r}, v{192+r}, v{196+r}")
    for r in range(4): a(f"v_mov_b32 v{196+r}, v{192+r}")
    for r in range(4): a(f"v_permlane32_swap_b32 v{196+r}, v{192+r}")
    for r in range(4): a(f"v_add_f32 v{192+r}, v{192+r}, v{196+r}")
    for r in range(4): a(f"v_mov_b32 v{196+r}, v{192+r}")
    for r in range(4): a(f"v_permlane16_swap_b32 v{196+r}, v{192+r}")
    for r in range(4): a(f"v_add_f32 v{192+r}, v{192+r}, v{196+r}")
    for r in range(4): a(f"v_add_f32_dpp v{196+r}, v{192+r}, v{192+r} row_ror:8 row_mask:0xf bank_mask:0xf")
    for r in range(4): a(f"v_add_f32_dpp v{192+r}, v{196+r}, v{196+r} row_ror:4 row_mask:0xf bank_mask:0xf")
    a("s_lshl_b32 s10, s7, 11"); a("s_lshl_b32 s13, s42, 10"); a("s_add_u32 s10, s10, s13")
    a("s_lshl_b32 s13, s6, 5"); a("s_add_u32 s10, s10, s13")
    a("v_lshl_add_u32 v5, v0, 3, s10")
    a("v_cvt_pk_bf16_f32 v192, v192, v193"); a("v_cvt_pk_bf16_f32 v193, v194, v195")
    a("s_mov_b64 exec, 15")
    a("global_store_dwordx2 v5, v[192:193], s[36:37]")
    a("s_mov_b64 exec, -1")
    lab("L_polled")
    a("s_cmp_eq_u32 s42, 0"); a("s_cbranch_scc0 L_fini")
    stamp(3)
    a("s_mov_b32 s42, 1")
    a(f"s_mov_b32 s60, {OP[1]}")
    a("s_barrier")
    stamp(4)
    a("s_branch L_fin")
    lab("L_fini")
    if ts:
        a("s_cmp_lg_u32 s3, 4"); a("s_cbranch_scc1 L_end")
        a("s_waitcnt vmcnt(0)")
        a("s_memrealtime s[80:81]")
        a("s_getreg_b32 s82, hwreg(HW_REG_HW_ID)"); a("s_getreg_b32 s83, hwreg(HW_REG_XCC_ID)")
        a("s_lshl_b32 s10, s2, 6"); a("s_add_u32 s10, s10, 0x20000000")
        a("s_waitcnt lgkmcnt(0)")
        a("v_mov_b32 v5, s10")
        a("v_mov_b32 v192, s78"); a("v_mov_b32 v193, s79"); a("v_mov_b32 v194, s80"); a("v_mov_b32 v195, s81")
        a("v_mov_b32 v196, s82"); a("v_mov_b32 v197, s83")
        a("v_mov_b32 v200, s66"); a("v_mov_b32 v201, s67"); a("v_mov_b32 v202, s68"); a("v_mov_b32 v203, s68")
        a("s_mov_b64 exec, 1")
        a("global_store_dwordx4 v5, v[192:195], s[40:41]")
        a("global_store_dwordx2 v5, v[196:197], s[40:41] offset:16")
        a("global_store_dwordx4 v5, v[200:203], s[40:41] offset:32")
    lab("L_end")
    a("s_endpgm")
    lab("F_consts")
    a(f"s_mov_b32 {sC}, {hex(f2u(CSC))}")
    a("v_and_b32 v5, 1, v2")
    a("v_cmp_eq_u32 vcc, 1, v5")
    a("v_mov_b32 v6, 0x0c0c0100"); a("v_mov_b32 v7, 0x01000c0c")
    a("v_cndmask_b32 v32, v6, v7, vcc")
    a("v_mov_b32 v6, 0x0c0c0302"); a("v_mov_b32 v7, 0x03020c0c")
    a("v_cndmask_b32 v33, v6, v7, vcc")
    a("v_lshrrev_b32 v5, 1, v2")
    a("v_mov_b32 v6, 0x0c0c0c0c")
    for m in range(4):
        a(f"v_cmp_eq_u32 vcc, {m}, v5")
        a("s_nop 1")
        a(f"v_cndmask_b32 v{8+m}, v6, v32, vcc")
        a(f"v_cndmask_b32 v{12+m}, v6, v33, vcc")
    a("s_setpc_b64 s[90:91]")
    lab("F_loadw")
    cm("32 loads: row step s61, per-lane offset v63, SRD s[52:55]")
    for i in range(32):
        r = RING + 4 * i
        a(f"buffer_load_dwordx4 v[{r}:{r+3}], v63, s[52:55], 0 offen{fl(wflag)}")
        if i < 31: a("v_add_u32 v63, s61, v63")
    a("s_setpc_b64 s[90:91]")
    lab("F_proj")
    cm("acc v[36:39] = sum_i masked(X_i) x W_i ; waits for all vector loads")
    a("s_waitcnt vmcnt(0)")
    def perm(dst, src, half):
        for m in range(4): a(f"v_perm_b32 v{dst+m}, v{src}, v{src}, v{8+4*half+m}")
    perm(52, 16, 0)
    for i in range(32):
        cur = 52 + 4 * (i & 1); nxt = 52 + 4 * ((i + 1) & 1)
        if i < 31: perm(nxt, 16 + ((i + 1) >> 1), (i + 1) & 1)
        else: a("s_nop 1")
        r = RING + 4 * i
        a(f"v_mfma_f32_16x16x32_bf16 v[36:39], v[{cur}:{cur+3}], v[{r}:{r+3}], {'0' if i == 0 else 'v[36:39]'}")
    a("s_nop 7")
    a("s_setpc_b64 s[90:91]")
    lab("F_sync4")
    a(f"v_mov_b32 v5, {CNT}"); a("v_mov_b32 v6, 1")
    a("s_waitcnt lgkmcnt(0)")
    a("s_mov_b64 exec, 1")
    a("ds_add_u32 v5, v6")
    lab("L_s4")
    a("ds_read_b32 v6, v5")
    a("s_waitcnt lgkmcnt(0)")
    a("v_readfirstlane_b32 s10, v6")
    a("s_cmp_ge_u32 s10, s62"); a("s_cbranch_scc1 L_s4d")
    a("s_sleep 1")
    a("s_branch L_s4")
    lab("L_s4d")
    a("s_mov_b64 exec, -1")
    a("s_setpc_b64 s[90:91]")
    L.append('.section .rodata,"a"'); L.append(".p2align 6"); L.append(f".amdhsa_kernel {KN}")
    L.append("  .amdhsa_next_free_vgpr 256"); L.append("  .amdhsa_next_free_sgpr 96"); L.append("  .amdhsa_accum_offset 256")
    L.append("  .amdhsa_group_segment_fixed_size 0"); L.append("  .amdhsa_kernarg_size 104"); L.append("  .amdhsa_user_sgpr_count 2")
    L.append("  .amdhsa_user_sgpr_kernarg_segment_ptr 1"); L.append("  .amdhsa_system_sgpr_workgroup_id_x 1")
    L.append("  .amdhsa_float_denorm_mode_32 3")
    L.append(".end_amdhsa_kernel")
    return "\n".join(L) + "\n"

if __name__ == "__main__":
    for spec in sys.argv[1:]:
        name, _, kv = spec.partition(":")
        kw = {}
        for item in kv.split(","):
            if not item: continue
            k, v = item.split("=")
            v = v.replace("+", " ")
            try: v = int(v)
            except: pass
            kw[k] = v
        open(name, "w").write(gen(**kw))
        print("wrote", name, kw)
```

```python
import re, struct

def f2u(x): return struct.unpack("<I", struct.pack("<f", x))[0]

TRANS = ("v_exp_f32", "v_log_f32", "v_rcp_f32", "v_rsq_f32", "v_sqrt_f32", "v_sin_f32", "v_cos_f32")

def regs(tok):
    tok = tok.strip().lstrip("-").strip("|")
    m = re.fullmatch(r"([vsa])(\d+)", tok)
    if m: return {(m.group(1), int(m.group(2)))}
    m = re.fullmatch(r"([vsa])\[(\d+):(\d+)\]", tok)
    if m: return {(m.group(1), i) for i in range(int(m.group(2)), int(m.group(3)) + 1)}
    if tok == "vcc": return {("s", "vcc_lo"), ("s", "vcc_hi")}
    if tok in ("vcc_lo", "vcc_hi"): return {("s", tok)}
    return set()

class Ins:
    def __init__(self, text):
        self.text = text
        t = text.split(";")[0].strip()
        t = re.sub(r"(\w+):\[[^\]]*\]", r"\1", t)
        t = re.sub(r"hwreg\([^)]*\)", "hwreg", t)
        self.op, _, rest = t.partition(" ")
        ops = [o.strip() for o in rest.split(",")] if rest.strip() else []
        if ops:
            last = ops[-1].split()
            self.mods = last[1:]
            ops[-1] = last[0]
        else: self.mods = []
        self.ops = ops
        op = self.op
        R = [regs(o) for o in ops]
        U = lambda l: set().union(*l) if l else set()
        self.valu = op.startswith("v_")
        self.mfma = op.startswith("v_mfma")
        self.trans = any(op.startswith(x) for x in TRANS)
        self.dpp = "_dpp" in op
        self.perml = op.startswith("v_permlane")
        self.rdl = op.startswith("v_readlane") or op.startswith("v_readfirstlane")
        self.vmem = op.startswith("buffer_") or op.startswith("global_")
        self.ds = op.startswith("ds_")
        self.wide_store = set()
        self.lanesel = set()
        if self.mfma:
            self.w = R[0]; self.a = R[1] | R[2]; self.c = R[3]; self.r = self.a | self.c
        elif self.perml:
            self.w = U(R); self.r = U(R)
        elif self.valu:
            self.w = R[0]; self.r = U(R[1:])
            if op.startswith("v_fmac") or op.startswith("v_mac") or self.dpp or op.startswith("v_writelane") or op.startswith("v_dot2c"): self.r |= R[0]
            if op.startswith("v_readlane") or op.startswith("v_writelane"): self.lanesel = R[2]
            if "_co_" in op: self.w |= R[1]
        elif self.vmem:
            isload = "_load" in op or ("_atomic" in op and "sc0" in self.mods)
            if isload and "lds" not in self.mods and "_lds_" not in op:
                self.w = R[0]; self.r = U(R[1:])
                if op.startswith("buffer_atomic"): self.r |= R[0]
            else:
                self.w = set(); self.r = U(R)
                if "x3" in op or "x4" in op:
                    if "_store" in op: self.wide_store = R[1] if op.startswith("global_") else R[0]
        elif self.ds:
            if op.startswith("ds_read") or "_rtn" in op or op.startswith("ds_bpermute") or op.startswith("ds_permute") or op.startswith("ds_swizzle"):
                self.w = R[0]; self.r = U(R[1:])
            else: self.w = set(); self.r = U(R)
        else:
            self.w = set(); self.r = set()
        self.states = 1
        if op == "s_nop": self.states = int(ops[0], 0) + 1

def need(p, c):
    n = 0
    vw = {x for x in p.w if x[0] in "va"}
    sw = {x for x in p.w if x[0] == "s"}
    if p.mfma:
        if c.mfma:
            if vw & c.a: n = max(n, 8)
            if vw & c.c and vw != c.c: n = max(n, 6)
            if vw & c.w and vw != c.c: n = max(n, 6)
        elif (c.valu or c.vmem or c.ds) and vw & (c.r | c.w): n = max(n, 8)
        if c.valu and not c.mfma and p.c & c.w: n = max(n, 3)
    elif p.valu:
        if c.mfma and vw & c.r: n = max(n, 2)
        if (c.dpp or c.perml) and vw & c.r: n = max(n, 2)
        if c.rdl and vw & c.r: n = max(n, 1)
        if p.trans and c.valu and not c.trans and vw & c.r: n = max(n, 1)
        if p.trans and c.valu and c.trans and vw & c.r: n = max(n, 1)
        if sw:
            if c.valu and sw & c.lanesel: n = max(n, 4)
            if c.valu and sw & c.r: n = max(n, 2)
            if c.vmem and sw & c.r: n = max(n, 5)
    if p.wide_store and p.wide_store & c.w: n = max(n, 2 if c.valu else 1)
    return n

def pad(lines):
    lines = list(lines)
    MAXW = 8
    while True:
        items = []
        labels = {}
        for i, l in enumerate(lines):
            s = l.split(";")[0].strip()
            if not s or s.startswith("."):
                if s.startswith(".section"): break
                continue
            if s.endswith(":"):
                labels[s[:-1]] = len(items); continue
            items.append((i, Ins(s)))
        n = len(items)
        pred = [[] for _ in range(n + 1)]
        calls = [k for k, (_, x) in enumerate(items) if x.op == "s_call_b64"]
        def succ_local(k):
            x = items[k][1]
            if x.op in ("s_endpgm", "s_setpc_b64"): return []
            if x.op == "s_branch": return [labels[x.ops[0]]]
            if x.op.startswith("s_cbranch"): return [labels[x.ops[0]], k + 1]
            return [k + 1]
        rets = {}
        for k in calls:
            f = items[k][1].ops[1]
            if f in rets: continue
            seen = set(); st = [labels[f]]; out = []
            while st:
                u = st.pop()
                if u in seen or u >= n: continue
                seen.add(u)
                if items[u][1].op == "s_setpc_b64" and items[u][1].ops[0] == items[k][1].ops[0]: out.append(u)
                st += succ_local(u)
            rets[f] = out
        for k, (_, x) in enumerate(items):
            if x.op == "s_call_b64":
                pred[labels[x.ops[1]]].append(k)
                for r in rets[x.ops[1]]: pred[k + 1].append(r)
            else:
                for s in succ_local(k):
                    pred[s].append(k)
        fix = None
        for k, (li, c) in enumerate(items):
            if not (c.valu or c.vmem or c.ds): continue
            worst = 0
            st = [(p, 0) for p in pred[k]]
            seen = {}
            while st:
                p, d = st.pop()
                if d >= MAXW or seen.get(p, 99) <= d: continue
                seen[p] = d
                x = items[p][1]
                worst = max(worst, need(x, c) - d)
                for q in pred[p]: st.append((q, d + x.states))
            if worst > 0:
                fix = (li, worst); break
        if fix is None: return lines
        lines.insert(fix[0], f"    s_nop {fix[1]-1}")
```

```python
import sys
from asmlib import pad, f2u
KN = "concat_heads__sliding_block_cached__mha_block_cached__decode_kernel"
HEADER = open("concat_heads__sliding_block_cached__mha_block_cached__decode.s.ref").read().split("; Override launch")[0]

def gen(S=6, ts=0, kvflag="nt", wflag="nt", prio=0, hprio=3, oprio=0, slp=2, tagbits=10, bar0=0, thr=0, wothr=0, abl=0):
    L = []
    def a(s):
        for x in s.split("|"): L.append("    " + x.strip())
    def lab(s): L.append(s + ":")
    def cm(s): L.append("    ; " + s)
    fl = lambda f: (" " + f) if f else ""
    CSC = 128 ** -0.5 * 1.4426950408889634
    W = 8 * (S - 1) + 4
    RING = 64
    TM = (1 << tagbits) - 1
    QA, QB = 0, 1024
    PA = 2048
    PB = PA + 8192
    MLA = PB + 2048
    MLB = MLA + 128
    lds = MLB + 128
    H1 = 0x100000
    HQ = 0x200000
    HM = 0x280000
    H2 = 0x300000
    H3 = 0x400000
    TS = 0x20000000
    sW, sB, sH, sW4, sC = "s3", "s7", "s6", "s8", "s9"
    sX, sT, sT32, sM = "s42", "s70", "s71", "s72"
    def stamp(i):
        if ts: a(f"s_memrealtime s[80:81] | s_waitcnt lgkmcnt(0) | s_mov_b32 s{76 + (i & 3)}, s80")
    def putstamps(lst):
        if not ts: return
        a(f"s_lshl_b32 s10, s2, 6 | s_add_u32 s10, s10, {TS} | v_mov_b32 v5, s10 | s_mov_b64 exec, 1")
        for slot, i in lst:
            a(f"v_mov_b32 v6, s{76 + (i & 3)} | global_store_dword v5, v6, s[40:41] offset:{4 * slot}")
        a("s_mov_b64 exec, -1")
    def swapadd(op, n, dst, src, tmp):
        a(f"v_mov_b32 v{tmp}, v{src} | v_permlane{n}_swap_b32 v{tmp}, v{src} | {op} v{dst}, v{src}, v{tmp}")
    L.append(HEADER.rstrip())
    L.append(f"; @launch grid=(256,1,1) block=(512,1,1) lds={lds}")
    L.append('.amdgcn_target "amdgcn-amd-amdhsa--gfx950"')
    L.append(".text"); L.append(f".globl {KN}"); L.append(".p2align 8"); L.append(f".type {KN},@function"); lab(KN)
    a("s_cmp_ge_u32 s2, 256 | s_cbranch_scc1 L_end")
    a("s_load_dwordx16 s[16:31], s[0:1], 0")
    a("s_load_dwordx8 s[32:39], s[0:1], 64")
    a("s_load_dwordx2 s[40:41], s[0:1], 96")
    if ts: a("s_memrealtime s[82:83]")
    a("v_lshrrev_b32 v5, 6, v0 | v_and_b32 v0, 63, v0 | v_readfirstlane_b32 s3, v5")
    cm("h = 4*(wg&7) + ((wg>>3)&3), b = wg>>5")
    a("s_and_b32 s4, s2, 7 | s_lshr_b32 s5, s2, 3")
    a("s_lshl_b32 s6, s4, 2 | s_and_b32 s10, s5, 3 | s_add_u32 s6, s6, s10")
    a("s_lshr_b32 s7, s5, 2")
    a("s_and_b32 s8, s3, 3")
    a("v_lshrrev_b32 v1, 4, v0 | v_and_b32 v2, 15, v0")
    a("s_mov_b32 s47, 0x20000 | s_mov_b32 s51, 0x20000")
    a("s_cmp_lt_u32 s3, 4 | s_cbranch_scc1 L_helper")
    cm("K offset: row (4*(c>>1&1) + (c>>2))*256 + 32g + 16(c&1); V offset: 16*lane; both + 4096*w4")
    a("s_lshl_b32 s10, s8, 12")
    if abl & 2: a("v_lshrrev_b32 v5, 1, v2 | v_lshlrev_b32 v5, 8, v5")
    else: a("v_and_b32 v5, 2, v2 | v_lshlrev_b32 v5, 9, v5 | v_lshrrev_b32 v6, 2, v2 | v_lshl_add_u32 v5, v6, 8, v5")
    a("v_and_b32 v6, 1, v2 | v_lshl_add_u32 v6, v1, 1, v6")
    a("v_lshl_add_u32 v5, v6, 4, v5 | v_add_u32 v3, s10, v5")
    a("v_lshl_add_u32 v4, v0, 4, s10")
    a("s_lshl_b32 s11, s7, 5 | s_add_u32 s11, s11, s6 | s_lshl_b32 s11, s11, 20")
    a("s_lshl_b32 s12, s7, 3 | s_add_u32 s12, s12, s4 | s_lshl_b32 s12, s12, 20")
    a("s_and_b32 s13, s6, 3 | s_lshl_b32 s13, s13, 16 | s_add_u32 s12, s12, s13 | s_add_u32 s12, s12, 786432")
    a("s_mov_b32 s55, 0x20000 | s_mov_b32 s59, 0x20000")
    a("s_mov_b32 s46, 0x100000 | s_mov_b32 s50, 0x100000 | s_mov_b32 s54, 0x10000 | s_mov_b32 s58, 0x10000")
    a("s_mov_b32 s60, 0x4000 | s_mov_b32 s61, 0x8000 | s_mov_b32 s62, 0xc000")
    a("s_waitcnt lgkmcnt(0)")
    a("s_add_u32 s52, s18, s12 | s_addc_u32 s53, s19, 0 | s_add_u32 s56, s20, s12 | s_addc_u32 s57, s21, 0")
    a("s_add_u32 s44, s28, s11 | s_addc_u32 s45, s29, 0 | s_add_u32 s48, s30, s11 | s_addc_u32 s49, s31, 0")
    def issueK(s, srd="s[44:47]", so="0", adv=True):
        for m in range(4):
            r = RING + 32 * s + 4 * m
            a(f"buffer_load_dwordx4 v[{r}:{r+3}], v3, {srd}, {so} offen offset:{2048*(m>>1) + 128*(m&1)}{fl(kvflag)}")
        if adv: a("v_add_u32 v3, 0x4000, v3")
    def issueV(s, srd="s[48:51]", so="0", adv=True):
        for m in range(4):
            r = RING + 32 * s + 16 + 4 * m
            a(f"buffer_load_dwordx4 v[{r}:{r+3}], v4, {srd}, {so} offen offset:{1024*m}{fl(kvflag)}")
        if adv: a("v_add_u32 v4, 0x4000, v4")
    if bar0: a("s_barrier")
    def throttle():
        if thr: a(f"s_waitcnt vmcnt({thr - 4})")
    for t in range(4):
        so = ["0", "s60", "s61", "s62"][t]
        throttle(); issueK(t, "s[52:55]", so, False); throttle(); issueV(t, "s[56:59]", so, False)
    for s in range(4, S):
        throttle(); issueK(s); throttle(); issueV(s)
    if prio: a(f"s_setprio {prio}")
    cm("byte selectors: lane c puts its value at element c&7 of the 8-element operand, zero elsewhere")
    a(f"s_mov_b32 {sC}, {hex(f2u(CSC))}")
    a("v_and_b32 v5, 1, v2 | v_cmp_eq_u32 vcc, 1, v5")
    a("v_mov_b32 v7, 0x0c0c0100 | v_mov_b32 v8, 0x01000c0c | v_cndmask_b32 v32, v7, v8, vcc")
    a("v_mov_b32 v7, 0x0c0c0302 | v_mov_b32 v8, 0x03020c0c | v_cndmask_b32 v33, v7, v8, vcc")
    a("v_bfe_u32 v5, v2, 1, 2 | v_mov_b32 v7, 0x0c0c0c0c")
    for m in range(4):
        a(f"v_cmp_eq_u32 vcc, {m}, v5 | v_cndmask_b32 v{8+m}, v7, v32, vcc | v_cndmask_b32 v{12+m}, v7, v33, vcc")
    cm("q operand addresses: column c holds head (c>>3) + 2*(c>>1&1), chunks 2g + (c&1) and +8")
    a("v_lshlrev_b32 v63, 4, v6")
    a("v_and_b32 v5, 2, v2 | v_lshrrev_b32 v7, 3, v2 | v_add_u32 v62, v5, v7")
    a("v_lshl_add_u32 v5, v62, 8, v63")
    a("s_barrier")
    stamp(0)
    a(f"ds_read_b128 v[16:19], v5 offset:{QA} | ds_read_b128 v[20:23], v5 offset:{QA+128}")
    def qk(kb):
        a(f"v_mfma_f32_16x16x32_bf16 v[24:27], v[{kb}:{kb+3}], v[16:19], 0")
        a(f"v_mfma_f32_16x16x32_bf16 v[28:31], v[{kb+8}:{kb+11}], v[16:19], 0")
        a(f"v_mfma_f32_16x16x32_bf16 v[24:27], v[{kb+4}:{kb+7}], v[20:23], v[24:27]")
        a(f"v_mfma_f32_16x16x32_bf16 v[28:31], v[{kb+12}:{kb+15}], v[20:23], v[28:31]")
    DPPM = "row_mask:0xf bank_mask:0xf"
    def qksum(dst):
        for r in range(4): a(f"v_mov_b32_dpp v{dst+r}, v{24+2*r} quad_perm:[0,0,2,2] {DPPM}")
        for r in range(4): a(f"v_add_f32_dpp v{dst+r}, v{25+2*r}, v{dst+r} quad_perm:[1,1,3,3] {DPPM}")
    def perm(dst, src, half):
        for m in range(4): a(f"v_perm_b32 v{dst+m}, v{src}, v{src}, v{8+4*half+m}")
    cm("---- A: 4 tiles of 16 keys, 4 heads")
    a("s_waitcnt lgkmcnt(0)")
    for t in range(4):
        a(f"s_waitcnt vmcnt({W - 8*t})")
        qk(RING + 32 * t)
        qksum(40 + 4 * t)
    a(f"ds_read_b128 v[16:19], v63 offset:{QB} | ds_read_b128 v[20:23], v63 offset:{QB+128}")
    a("v_max3_f32 v24, v40, v41, v42")
    for k in range(43, 55, 2): a(f"v_max3_f32 v24, v24, v{k}, v{k+1}")
    a("v_max_f32 v24, v24, v55")
    swapadd("v_max_f32", 32, 24, 24, 5); swapadd("v_max_f32", 16, 24, 24, 5)
    a(f"v_mul_f32 v26, {sC}, v24")
    for k in range(40, 56): a(f"v_fma_f32 v{k}, v{k}, {sC}, -v26")
    for k in range(40, 56): a(f"v_exp_f32 v{k}, v{k}")
    a("v_add_f32 v25, v40, v41")
    for k in range(42, 56): a(f"v_add_f32 v25, v25, v{k}")
    for t in range(4):
        a(f"v_cvt_pk_bf16_f32 v{40+4*t}, v{40+4*t}, v{41+4*t} | v_cvt_pk_bf16_f32 v{41+4*t}, v{42+4*t}, v{43+4*t}")
    swapadd("v_add_f32", 32, 25, 25, 5); swapadd("v_add_f32", 16, 25, 25, 5)
    a(f"s_waitcnt vmcnt({8 * (S - 4)})")
    for t in range(4):
        vb = RING + 32 * t + 16
        for s in range(2):
            q = 2 * s
            a(f"v_mov_b32_dpp v{28+2*s}, v{40+4*t} quad_perm:[{q},{q},{q},{q}] {DPPM}")
            a(f"v_mov_b32_dpp v{29+2*s}, v{41+4*t} quad_perm:[{q},{q},{q},{q}] {DPPM}")
        seq = [(s, r) for r in range(4) for s in range(2)]
        for n, (s, r) in enumerate(seq):
            buf = 56 if (n & 1) == 0 else RING + 32 * t
            perm(buf, 28 + 2 * s + (r >> 1), r & 1)
            c = "0" if (t == 0 and r == 0) else f"v[{32+4*s}:{35+4*s}]"
            a(f"v_mfma_f32_16x16x32_bf16 v[{32+4*s}:{35+4*s}], v[{buf}:{buf+3}], v[{vb+4*r}:{vb+4*r+3}], {c}")
        issueK(t); issueV(t)
    cm("partials: head 2s + (g>>1), dims 8c + 4(g&1)")
    a(f"s_lshl_b32 s10, s8, 9")
    a("v_and_b32 v5, 1, v1 | v_lshlrev_b32 v5, 4, v5 | v_lshl_add_u32 v5, v2, 5, v5 | v_add_u32 v61, s10, v5")
    a("v_lshrrev_b32 v6, 1, v1 | v_lshl_add_u32 v5, v6, 11, v61")
    a("s_lshl_b32 s10, s8, 3 | v_lshl_add_u32 v6, v62, 5, s10 | v_mov_b32 v60, s10")
    a(f"ds_write_b128 v5, v[32:35] offset:{PA} | ds_write_b128 v5, v[36:39] offset:{PA+4096}")
    a("s_mov_b64 exec, 0xffff")
    a(f"ds_write_b64 v6, v[24:25] offset:{MLA}")
    a("s_mov_b64 exec, -1")
    a("s_mov_b32 s14, 64")
    a("s_waitcnt lgkmcnt(0)")
    a("v_mov_b32 v36, 0xff7fffff | v_mov_b32 v38, 0 | v_mov_b32 v39, 0")
    for r in range(32, 36): a(f"v_mov_b32 v{r}, 0")
    a("s_barrier")
    stamp(1)
    cm("---- B: 64 tiles; v36 running max, v38 scaled max, v39 sum")
    lab("L_att")
    order = [(4 + i) % S for i in range(S)]
    for i, s in enumerate(order):
        kb = RING + 32 * s; vb = kb + 16
        a(f"s_waitcnt vmcnt({W})")
        qk(kb)
        issueK(s)
        qksum(40)
        a("v_max3_f32 v5, v40, v41, v42 | v_max_f32 v5, v5, v43 | v_cmp_gt_f32 vcc, v5, v36")
        a(f"s_cbranch_vccnz L_rare{s}")
        lab(f"L_back{s}")
        for r in range(4): a(f"v_fma_f32 v{40+r}, v{40+r}, {sC}, -v38")
        for r in range(4): a(f"v_exp_f32 v{40+r}, v{40+r}")
        a("v_add_f32 v6, v40, v41 | v_cvt_pk_bf16_f32 v44, v40, v41 | v_add_f32 v7, v42, v43 | v_cvt_pk_bf16_f32 v45, v42, v43")
        a("v_add_f32 v39, v39, v6")
        perm(48, 44, 0); perm(52, 44, 1)
        a("v_add_f32 v39, v39, v7")
        a(f"s_waitcnt vmcnt({W})")
        a(f"v_mfma_f32_16x16x32_bf16 v[32:35], v[48:51], v[{vb}:{vb+3}], v[32:35]")
        perm(48, 45, 0)
        a(f"v_mfma_f32_16x16x32_bf16 v[32:35], v[52:55], v[{vb+4}:{vb+7}], v[32:35]")
        perm(52, 45, 1)
        a(f"v_mfma_f32_16x16x32_bf16 v[32:35], v[48:51], v[{vb+8}:{vb+11}], v[32:35]")
        a("s_sub_u32 s14, s14, 1")
        a(f"v_mfma_f32_16x16x32_bf16 v[32:35], v[52:55], v[{vb+12}:{vb+15}], v[32:35]")
        a("s_cmp_eq_u32 s14, 0")
        a("s_cbranch_scc1 L_attdone")
        issueV(s)
        if i == S - 1: a("s_branch L_att")
    i0 = L.index("L_att:")
    def keep(l):
        l = l.strip()
        if l.startswith("v_add_u32"): return True
        if l.startswith("v_mfma"): return not (abl & 5)
        if l.startswith("v_") or l.startswith("s_cbranch_vccnz"): return not (abl & 9)
        return True
    L[i0:] = [l for l in L[i0:] if keep(l)]
    lab("L_attdone")
    swapadd("v_add_f32", 32, 39, 39, 5); swapadd("v_add_f32", 16, 37, 39, 5)
    a("s_mov_b32 exec_hi, 0")
    a(f"ds_write_b128 v61, v[32:35] offset:{PB}")
    a("s_mov_b64 exec, 1")
    a(f"ds_write_b64 v60, v[36:37] offset:{MLB}")
    a("s_mov_b64 exec, -1")
    stamp(2)
    a("s_waitcnt lgkmcnt(0)")
    a("s_barrier")
    if ts:
        a("s_cmp_lg_u32 s3, 4 | s_cbranch_scc1 L_end")
        putstamps([(6, 0), (8, 1), (7, 2)])
    a("s_endpgm")
    for s in range(S):
        lab(f"L_rare{s}")
        swapadd("v_max_f32", 32, 5, 5, 6)
        a("v_mov_b32 v6, v5 | v_permlane16_swap_b32 v6, v5 | v_max3_f32 v5, v5, v6, v36")
        a(f"v_sub_f32 v6, v36, v5 | v_mul_f32 v6, {sC}, v6 | v_exp_f32 v6, v6")
        a(f"v_mov_b32 v36, v5 | v_mul_f32 v38, {sC}, v5")
        for r in range(32, 36): a(f"v_mul_f32 v{r}, v{r}, v6")
        a("v_mul_f32 v39, v39, v6")
        a(f"s_branch L_back{s}")
    lab("L_helper")
    a(f"s_and_b32 {sX}, s8, 1")
    a("s_mov_b32 s46, 0x400000 | s_mov_b32 s50, 8192")
    a("s_cmp_ge_u32 s8, 2 | s_cbranch_scc1 L_hwo")
    if hprio: a(f"s_setprio {hprio}")
    a("s_mov_b32 s92, 0")
    cm("wq tile: rows 128*(b>>1).., columns h*128 + 64*(b&1)..")
    a("s_lshr_b32 s13, s7, 1 | s_lshl_b32 s60, s13, 20 | s_lshl_b32 s10, s6, 8 | s_add_u32 s60, s60, s10")
    a("s_and_b32 s15, s7, 1 | s_lshl_b32 s10, s15, 7 | s_add_u32 s60, s60, s10")
    a("s_mov_b32 s61, 8192 | s_mov_b32 s62, 204800")
    a("v_lshlrev_b32 v63, 16, v1 | v_lshl_add_u32 v63, v2, 3, v63")
    a("v_and_b32 v5, 7, v2 | v_lshlrev_b32 v5, 10, v5 | v_lshl_add_u32 v5, v1, 4, v5 | s_lshl_b32 s10, s13, 8")
    a(f"s_cmp_eq_u32 {sX}, 0")
    a("s_waitcnt lgkmcnt(0)")
    a("s_cselect_b32 s44, s22, s32 | s_cselect_b32 s45, s23, s33 | s_cselect_b32 s48, s16, s26 | s_cselect_b32 s49, s17, s27")
    a(f"s_load_dword {sT32}, s[40:41], 0")
    for k in range(4): a(f"buffer_load_dwordx4 v[{16+4*k}:{19+4*k}], v5, s[48:51], s10 offen offset:{64*k}")
    cm("publish address: H1 + X*512K + (4g + r)*64K + h*2K + rb*512 + half*256 + 16c")
    a(f"s_lshl_b32 s10, {sX}, 19 | s_lshl_b32 s11, s6, 11 | s_add_u32 s10, s10, s11 | s_lshl_b32 s11, s7, 8 | s_add_u32 s10, s10, s11")
    a(f"s_add_u32 s10, s10, {H1}")
    a("v_lshl_add_u32 v58, v2, 4, s10")
    a("s_branch L_hw")
    lab("L_hwo")
    if oprio: a(f"s_setprio {oprio}")
    a("s_mov_b32 s92, 1")
    cm("wo tile: rows h*128.., columns 64*b..")
    a("s_lshl_b32 s60, s6, 17 | s_lshl_b32 s10, s7, 7 | s_add_u32 s60, s60, s10")
    a("s_mov_b32 s61, 1024 | s_mov_b32 s62, 25600")
    a("v_lshlrev_b32 v63, 13, v1 | v_lshl_add_u32 v63, v2, 3, v63")
    a(f"s_cmp_eq_u32 {sX}, 0")
    a("s_waitcnt lgkmcnt(0)")
    a("s_cselect_b32 s44, s24, s34 | s_cselect_b32 s45, s25, s35")
    a(f"s_load_dword {sT32}, s[40:41], 0")
    cm("publish address: H3 + X*512K + (4g + r)*64K + (4b + (c>>2))*2K + h*64 + 16(c&3)")
    a(f"s_lshl_b32 s10, {sX}, 19 | s_lshl_b32 s11, s7, 13 | s_add_u32 s10, s10, s11 | s_lshl_b32 s11, s6, 6 | s_add_u32 s10, s10, s11")
    a(f"s_add_u32 s10, s10, {H3}")
    a("v_lshrrev_b32 v5, 2, v2 | v_lshl_add_u32 v5, v5, 11, s10 | v_and_b32 v6, 3, v2 | v_lshl_add_u32 v58, v6, 4, v5")
    if bar0: a("s_barrier")
    lab("L_hw")
    for ks in range(4):
        for r in range(8):
            d = 64 + 16 * ks + 2 * r
            a(f"buffer_load_dwordx2 v[{d}:{d+1}], v63, s[44:47], s60 offen{fl(wflag)}")
            if (ks, r) != (3, 7): a(f"s_add_u32 s60, s60, {'s61' if r < 7 else 's62'}")
    a("v_lshl_add_u32 v58, v1, 18, v58")
    for r in range(1, 4): a(f"v_add_u32 v{58+r}, {hex(0x10000*r)}, v58")
    a(f"s_mov_b32 {sC}, {hex(f2u(CSC))} | s_mov_b32 {sM}, {TM} | s_mov_b32 s73, 0x05040100 | s_mov_b32 s74, 0x07060302")
    a("s_waitcnt lgkmcnt(0)")
    cm("tag = (word found at d_ws[0]) + 1: tells this launch's hand-offs from an earlier launch's")
    a(f"s_add_u32 {sT32}, {sT32}, 1 | s_and_b32 {sT}, {sT32}, {sM} | v_mov_b32 v62, {sT}")
    if bar0 != 1: a("s_cmp_eq_u32 s92, 0 | s_cbranch_scc1 L_htr")
    a("s_barrier")
    lab("L_htr")
    if ts:
        a("s_waitcnt vmcnt(32)"); stamp(2)
    cm("transpose inside each lane: (row pair, column e) -> operand for k-step ks, column set e")
    for ks in range(4):
        a(f"s_waitcnt vmcnt({24 - 8*ks})")
        for e in range(4):
            for m in range(4):
                lo = 64 + 16 * ks + 4 * m + (e >> 1)
                a(f"v_perm_b32 v{128+16*ks+4*e+m}, v{lo+2}, v{lo}, {'s74' if e & 1 else 's73'}")
    a("s_cmp_eq_u32 s92, 0 | s_cbranch_scc0 L_hb2")
    if bar0 == 2: a("s_barrier")
    if not (abl & 64): a("s_call_b64 s[90:91], F_proj")
    stamp(0)
    def spin_head(name):
        a("s_mov_b32 s63, 0x4000"); lab(name)
    def spin_tail(name, acc):
        a(f"v_and_b32 v{acc}, {sM}, v{acc} | v_cmp_ne_u32 vcc, 0, v{acc}")
        a(f"s_cbranch_vccz {name}_ok")
        a(f"s_sleep {slp} | s_sub_u32 s63, s63, 1 | s_cbranch_scc0 {name}")
        lab(name + "_ok")
    def untag(lo, n, acc):
        for k in range(lo, lo + n): a(f"v_xor_b32 v{k}, {sT}, v{k}")
        a(f"v_or_b32 v{acc}, v{lo}, v{lo+1}")
        for k in range(lo + 2, lo + n, 2): a(f"v_or3_b32 v{acc}, v{acc}, v{k}, v{k+1}")
    if abl & 32: a("s_branch L_hb1")
    cm("gather q partials")
    a(f"s_lshl_b32 s10, s7, 16 | s_add_u32 s10, s10, {H1}")
    a("v_lshlrev_b32 v7, 3, v0")
    a(f"s_cmp_eq_u32 {sX}, 0 | s_cbranch_scc1 L_gqa")
    a(f"s_lshl_b32 s11, s6, 11 | s_add_u32 s10, s10, s11 | s_add_u32 s10, s10, 0x80000")
    a("v_lshl_add_u32 v5, v0, 4, s10")
    def qfin(base, ldsoff):
        for r in range(4): a(f"v_add_f32 v{base+r}, v{base+r}, v{base+4+r}")
        for r in range(4): a(f"v_mov_b32 v{base+4+r}, v{base+r}")
        for r in range(4): a(f"v_permlane32_swap_b32 v{base+4+r}, v{base+r}")
        for r in range(4): a(f"v_add_f32 v{base+r}, v{base+r}, v{base+4+r}")
        a(f"v_cvt_pk_bf16_f32 v{base}, v{base}, v{base+1} | v_cvt_pk_bf16_f32 v{base+1}, v{base+2}, v{base+3}")
    spin_head("L_pqb")
    for t in range(2): a(f"global_load_dwordx4 v[{64+4*t}:{67+4*t}], v5, s[40:41] offset:{1024*t} sc1")
    a("s_waitcnt vmcnt(0)")
    untag(64, 8, 6)
    spin_tail("L_pqb", 6)
    qfin(64, QB)
    a("s_mov_b32 exec_hi, 0")
    a(f"ds_write_b64 v7, v[64:65] offset:{QB}")
    a("s_branch L_hb1")
    lab("L_gqa")
    a(f"s_lshl_b32 s11, s4, 13 | s_add_u32 s10, s10, s11 | s_add_u32 s10, s10, 4096")
    a("v_lshl_add_u32 v5, v0, 4, s10")
    spin_head("L_pqa")
    for t in range(8): a(f"global_load_dwordx4 v[{64+4*t}:{67+4*t}], v5, s[40:41] offset:{1024*t - 4096} sc1")
    a("s_waitcnt vmcnt(0)")
    untag(64, 32, 6)
    spin_tail("L_pqa", 6)
    for hh in range(4): qfin(64 + 8 * hh, QA)
    a("s_mov_b32 exec_hi, 0")
    for hh in range(4): a(f"ds_write_b64 v7, v[{64+8*hh}:{65+8*hh}] offset:{QA + 256*hh}")
    lab("L_hb1")
    a("s_mov_b64 exec, -1")
    stamp(1)
    a("s_waitcnt lgkmcnt(0)")
    a("s_barrier")
    lab("L_hb2")
    if hprio: a(f"s_setprio {hprio}")
    cm("addresses for the combine of A head w4, and its publication to workgroup (4*kvh + w4, b), slot h&3")
    a("v_lshrrev_b32 v57, 5, v0")
    a("s_lshl_b32 s10, s8, 11 | v_lshl_add_u32 v5, v0, 4, s10")
    a("s_lshl_b32 s10, s8, 5 | v_lshl_add_u32 v6, v57, 3, s10")
    a("s_lshl_b32 s10, s7, 5 | s_lshl_b32 s11, s4, 2 | s_add_u32 s10, s10, s11 | s_add_u32 s10, s10, s8")
    a("s_lshl_b32 s10, s10, 2 | s_and_b32 s11, s6, 3 | s_add_u32 s10, s10, s11")
    a(f"s_lshl_b32 s11, s10, 9 | s_add_u32 s11, s11, {HQ} | v_lshl_add_u32 v56, v0, 4, s11")
    a(f"s_lshl_b32 s11, s10, 4 | s_add_u32 s11, s11, {HM} | v_mov_b32 v55, s11")
    a("s_barrier")
    def ldsparts(po, mo):
        a(f"ds_read_b64 v[72:73], v6 offset:{mo} | ds_read_b64 v[76:77], v6 offset:{mo+16}")
        a(f"ds_read_b128 v[64:67], v5 offset:{po} | ds_read_b128 v[68:71], v5 offset:{po+1024}")
        a("s_waitcnt lgkmcnt(0)")
    if abl & 16:
        a("s_cmp_eq_u32 s8, 3 | s_cbranch_scc1 L_hcont | s_endpgm")
    ldsparts(PA, MLA)
    a("s_call_b64 s[90:91], F_comb")
    for r in range(4): a(f"v_bfi_b32 v{64+r}, {sM}, v62, v{64+r}")
    a(f"v_mov_b32 v74, v73 | v_mov_b32 v73, {sT32} | v_mov_b32 v75, {sT32}")
    a("s_mov_b32 exec_hi, 0")
    a("global_store_dwordx4 v56, v[64:67], s[40:41] sc1")
    a("s_mov_b64 exec, 1")
    a("global_store_dwordx4 v55, v[72:75], s[40:41] sc1")
    a("s_mov_b64 exec, -1")
    a("s_cmp_eq_u32 s92, 0 | s_cbranch_scc0 L_hcont")
    if ts:
        a(f"s_cmp_eq_u32 {sX}, 0 | s_cbranch_scc1 L_tsq")
        putstamps([(14, 1)])
        a("s_endpgm")
        lab("L_tsq")
        putstamps([(12, 0), (13, 1), (15, 2)])
    a("s_endpgm")
    lab("L_hcont")
    cm("tail addresses. v54: o publish, v53: o gather, v52: final gather, v51: output")
    a(f"s_lshl_b32 s10, {sX}, 17 | s_lshl_b32 s11, s6, 12 | s_add_u32 s10, s10, s11 | s_add_u32 s10, s10, {H2}")
    a("v_and_b32 v5, 7, v2 | v_lshl_add_u32 v5, v5, 9, s10 | v_lshrrev_b32 v6, 3, v2 | v_lshl_add_u32 v5, v6, 6, v5 | v_lshl_add_u32 v53, v1, 4, v5")
    cm("lane l<32 holds dims 4l..: ks = l>>3, g = l>>1&3, v = l&1 -> ((ks&1)*2 + v)*128 + (ks>>1)*64 + 16g")
    a("s_lshl_b32 s11, s7, 9 | s_add_u32 s10, s10, s11")
    a("v_lshl_add_u32 v5, v6, 8, s10 | v_and_b32 v6, 1, v0 | v_lshl_add_u32 v5, v6, 7, v5")
    a("v_and_b32 v6, 1, v1 | v_lshl_add_u32 v5, v6, 6, v5 | v_bfe_u32 v6, v0, 1, 2 | v_lshl_add_u32 v54, v6, 4, v5")
    a(f"s_lshl_b32 s10, {sX}, 19 | s_lshl_b32 s11, s7, 16 | s_add_u32 s10, s10, s11 | s_lshl_b32 s11, s6, 11 | s_add_u32 s10, s10, s11")
    a(f"s_add_u32 s10, s10, {H3} | v_lshl_add_u32 v52, v0, 4, s10")
    a(f"s_lshl_b32 s10, s7, 11 | s_lshl_b32 s11, {sX}, 10 | s_add_u32 s10, s10, s11 | s_lshl_b32 s11, s6, 5 | s_add_u32 s10, s10, s11")
    a("v_lshl_add_u32 v51, v0, 3, s10")
    a("s_mov_b32 s75, 0xffff0000")
    a(f"s_cmp_eq_u32 {sX}, 0 | s_cbranch_scc1 L_ga")
    a("v_lshlrev_b32 v5, 4, v0 | v_lshlrev_b32 v6, 3, v57")
    a("s_barrier")
    stamp(0)
    ldsparts(PB, MLB)
    a("s_branch L_tail")
    lab("L_ga")
    a("s_lshl_b32 s10, s7, 5 | s_add_u32 s10, s10, s6")
    a(f"s_lshl_b32 s11, s10, 11 | s_add_u32 s11, s11, {HQ} | v_lshl_add_u32 v5, v0, 4, s11")
    a(f"s_lshl_b32 s11, s10, 6 | s_add_u32 s11, s11, {HM} | v_lshl_add_u32 v7, v57, 4, s11")
    spin_head("L_pa")
    for t in range(2): a(f"global_load_dwordx4 v[{64+4*t}:{67+4*t}], v5, s[40:41] offset:{1024*t} sc1")
    for t in range(2): a(f"global_load_dwordx4 v[{72+4*t}:{75+4*t}], v7, s[40:41] offset:{32*t} sc1")
    a("s_waitcnt vmcnt(0)")
    untag(64, 8, 6)
    for k in (73, 75, 77, 79): a(f"v_xor_b32 v{k}, {sT32}, v{k}")
    a(f"v_and_b32 v6, {sM}, v6 | v_or3_b32 v6, v6, v73, v75 | v_or3_b32 v6, v6, v77, v79 | v_min_u32 v6, 1, v6")
    spin_tail("L_pa", 6)
    a("v_mov_b32 v73, v74 | v_mov_b32 v77, v78")
    lab("L_tail")
    a("s_call_b64 s[90:91], F_comb")
    a("v_rcp_f32 v73, v73")
    for r in range(4): a(f"v_mul_f32 v{64+r}, v{64+r}, v73")
    a("v_cvt_pk_bf16_f32 v65, v64, v65 | v_cvt_pk_bf16_f32 v67, v66, v67")
    a("v_lshl_or_b32 v64, v65, 16, v62 | v_lshl_or_b32 v66, v67, 16, v62")
    a("v_and_or_b32 v65, v65, s75, v62 | v_and_or_b32 v67, v67, s75, v62")
    a("s_mov_b32 exec_hi, 0")
    a("global_store_dwordx4 v54, v[64:67], s[40:41] sc1")
    a("s_mov_b64 exec, -1")
    spin_head("L_po")
    for t in range(4): a(f"global_load_dwordx4 v[{80+4*t}:{83+4*t}], v53, s[40:41] offset:{128*t} sc1")
    a("s_waitcnt vmcnt(0)")
    untag(80, 16, 6)
    spin_tail("L_po", 6)
    stamp(1)
    for k in range(8): a(f"v_perm_b32 v{16+k}, v{81+2*k}, v{80+2*k}, s74")
    for k in range(8): a(f"v_mov_b32_dpp v{24+k}, v{16+k} row_ror:8 {DPPM}")
    a("s_call_b64 s[90:91], F_proj")
    spin_head("L_pf")
    for t in range(2): a(f"global_load_dwordx4 v[{64+4*t}:{67+4*t}], v52, s[40:41] offset:{1024*t} sc1")
    a("s_waitcnt vmcnt(0)")
    untag(64, 8, 6)
    spin_tail("L_pf", 6)
    for r in range(4): a(f"v_add_f32 v{64+r}, v{64+r}, v{68+r}")
    for n in (32, 16):
        for r in range(4): a(f"v_mov_b32 v{68+r}, v{64+r}")
        for r in range(4): a(f"v_permlane{n}_swap_b32 v{68+r}, v{64+r}")
        for r in range(4): a(f"v_add_f32 v{64+r}, v{64+r}, v{68+r}")
    for r in range(4): a(f"v_add_f32_dpp v{68+r}, v{64+r}, v{64+r} row_ror:8 {DPPM}")
    for r in range(4): a(f"v_add_f32_dpp v{64+r}, v{68+r}, v{68+r} row_ror:4 {DPPM}")
    a("v_cvt_pk_bf16_f32 v64, v64, v65 | v_cvt_pk_bf16_f32 v65, v66, v67")
    a("s_mov_b64 exec, 15")
    a("global_store_dwordx2 v51, v[64:65], s[36:37]")
    cm("workgroup 0 has now seen data that depends on every workgroup: leave this launch's tag in d_ws[0]")
    a(f"s_lshl_b32 s10, s2, 1 | s_add_u32 s10, s10, {sX} | s_cmp_eq_u32 s10, 1 | s_cbranch_scc0 L_fini")
    a(f"s_mov_b64 exec, 1 | v_mov_b32 v5, 0 | v_mov_b32 v6, {sT32}")
    a("global_store_dword v5, v6, s[40:41]")
    lab("L_fini")
    if ts:
        a("s_mov_b64 exec, -1")
        a("s_waitcnt vmcnt(0)")
        stamp(2)
        a(f"s_cmp_eq_u32 {sX}, 0 | s_cbranch_scc0 L_tsb")
        putstamps([(9, 2)])
        a("s_endpgm")
        lab("L_tsb")
        putstamps([(10, 0), (11, 1)])
        a("s_getreg_b32 s84, hwreg(HW_REG_HW_ID) | s_getreg_b32 s85, hwreg(HW_REG_XCC_ID)")
        a("v_mov_b32 v64, s82 | v_mov_b32 v65, s83 | v_mov_b32 v66, s80 | v_mov_b32 v67, s81 | v_mov_b32 v68, s84 | v_mov_b32 v69, s85")
        a("s_mov_b64 exec, 1")
        a("global_store_dwordx4 v5, v[64:67], s[40:41] | global_store_dwordx2 v5, v[68:69], s[40:41] offset:16")
    lab("L_end")
    a("s_endpgm")
    lab("F_proj")
    cm("D_e = sum_ks x[ks] * Wt[ks][e]; rows 0..7 are the batches; tag and publish")
    for ks in range(4):
        for e in range(4):
            w = 128 + 16 * ks + 4 * e
            a(f"v_mfma_f32_16x16x32_bf16 v[{32+4*e}:{35+4*e}], v[{16+4*ks}:{19+4*ks}], v[{w}:{w+3}], {'0' if ks == 0 else f'v[{32+4*e}:{35+4*e}]'}")
    for e in range(4):
        for r in range(4): a(f"v_bfi_b32 v{96+4*r+e}, {sM}, v62, v{32+4*e+r}")
    a("s_mov_b32 exec_hi, 0")
    for r in range(4): a(f"global_store_dwordx4 v{58+r}, v[{96+4*r}:{99+4*r}], s[40:41] sc1")
    a("s_mov_b64 exec, -1")
    a("s_setpc_b64 s[90:91]")
    lab("F_comb")
    cm("four partials (o v64-67 / v68-71, (m,l) v72-73 / v76-77, two per half wave) -> o v64-67, m v72, l v73")
    a("v_max_f32 v78, v72, v76")
    swapadd("v_max_f32", 32, 78, 78, 79)
    a("v_sub_f32 v72, v72, v78 | v_sub_f32 v76, v76, v78")
    a(f"v_mul_f32 v72, {sC}, v72 | v_mul_f32 v76, {sC}, v76 | v_exp_f32 v72, v72 | v_exp_f32 v76, v76")
    a("v_mul_f32 v73, v72, v73")
    for r in range(4): a(f"v_mul_f32 v{64+r}, v72, v{64+r}")
    a("v_fmac_f32 v73, v76, v77")
    for r in range(4): a(f"v_fmac_f32 v{64+r}, v76, v{68+r}")
    a("v_mov_b32 v77, v73")
    for r in range(4): a(f"v_mov_b32 v{68+r}, v{64+r}")
    a("v_permlane32_swap_b32 v77, v73")
    for r in range(4): a(f"v_permlane32_swap_b32 v{68+r}, v{64+r}")
    a("v_add_f32 v73, v73, v77")
    for r in range(4): a(f"v_add_f32 v{64+r}, v{64+r}, v{68+r}")
    a("v_mov_b32 v72, v78")
    a("s_setpc_b64 s[90:91]")
    L = pad(L)
    L.append('.section .rodata,"a"'); L.append(".p2align 6"); L.append(f".amdhsa_kernel {KN}")
    L.append("  .amdhsa_next_free_vgpr 256"); L.append("  .amdhsa_next_free_sgpr 96"); L.append("  .amdhsa_accum_offset 256")
    L.append("  .amdhsa_group_segment_fixed_size 0"); L.append("  .amdhsa_kernarg_size 104"); L.append("  .amdhsa_user_sgpr_count 2")
    L.append("  .amdhsa_user_sgpr_kernarg_segment_ptr 1"); L.append("  .amdhsa_system_sgpr_workgroup_id_x 1")
    L.append("  .amdhsa_float_denorm_mode_32 3")
    L.append(".end_amdhsa_kernel")
    return "\n".join(L) + "\n"

if __name__ == "__main__":
    for spec in sys.argv[1:]:
        name, _, kv = spec.partition(":")
        kw = {}
        for item in kv.split(","):
            if not item: continue
            k, v = item.split("=")
            v = v.replace("+", " ")
            try: v = int(v)
            except: pass
            kw[k] = v
        open(name, "w").write(gen(**kw))
        print("wrote", name, kw)
```
